```python
import torch

def _softmax(x, axis=-1):
    return torch.softmax(x, dim=axis)
def _gelu(x):
    return torch.nn.functional.gelu(x, approximate="tanh")
def _silu(x):
    return torch.nn.functional.silu(x)
def _sigmoid(x):
    return torch.sigmoid(x)
def _layernorm(x, axis=-1, eps=1e-5):
    m = x.mean(dim=axis, keepdim=True)
    v = x.var(dim=axis, keepdim=True, unbiased=False)
    return (x - m) / torch.sqrt(v + eps)
def _scatter_add(tgt, idx, src, axis=0):
    return tgt.clone().index_add_(axis, idx, src)
def _segment_sum(src, seg, n):
    out = torch.zeros((n,) + src.shape[1:], dtype=src.dtype)
    return out.index_add_(0, seg, src)
def _pad(x, pw):
    flat = tuple(v for pair in reversed(pw) for v in pair)
    return torch.nn.functional.pad(x, flat)

kernel_name = 'recurrent_scan__gqa_block_cached__geglu_ffn__decode'

def setup_inputs():

    _w = (lambda a: (lambda t: t.to(torch.bfloat16) if t.is_floating_point() else t)(torch.as_tensor(a)))
    def _A_setup():
        B, Sq, D = 1, 1, 448
        Hq, Hkv, Sk, Dh = 16, 8, 16384, 256
        assert Hq % Hkv == 0, (Hq, Hkv)
        return {
            "x": _w((lambda *s: torch.randn(*s, dtype=torch.bfloat16) * 0.05)(B, Sq, D)),
            "k_cache": _w((lambda *s: torch.randn(*s, dtype=torch.bfloat16) * 0.8)(B, Hkv, Sk, Dh)),
            "v_cache": _w((lambda *s: torch.randn(*s, dtype=torch.bfloat16) * 0.8)(B, Hkv, Sk, Dh)),
            "wq": _w((lambda *s: torch.randn(*s, dtype=torch.bfloat16) * 0.8)(D, Hq * Dh) * (D ** -0.5)),
            "wo": _w((lambda *s: torch.randn(*s, dtype=torch.bfloat16) * 0.8)(Hq * Dh, D) * ((Hq * Dh) ** -0.5)),
        }
    _A_in = _A_setup()

    def _B_setup():
        B, S, D, F = 1, 1, 448, 1792
        return {
            "x": _w((lambda *s: torch.randn(*s, dtype=torch.bfloat16) * 0.05)(B, S, D)),
            "w_gate": _w((lambda *s: torch.randn(*s, dtype=torch.bfloat16) * 0.2)(D, F)),
            "w_up": _w((lambda *s: torch.randn(*s, dtype=torch.bfloat16) * 0.2)(D, F)),
            "w_down": _w((lambda *s: torch.randn(*s, dtype=torch.bfloat16) * 0.2)(F, D)),
        }
    _B_in = _B_setup()

    return {
        "A_x": _A_in["x"],
        "A_k_cache": _A_in["k_cache"],
        "A_v_cache": _A_in["v_cache"],
        "A_wq": _A_in["wq"],
        "A_wo": _A_in["wo"],
        "B_x": _B_in["x"],
        "B_w_gate": _B_in["w_gate"],
        "B_w_up": _B_in["w_up"],
        "B_w_down": _B_in["w_down"],
    }

def reference(A_x, A_k_cache, A_v_cache, A_wq, A_wo, B_x, B_w_gate, B_w_up, B_w_down):
    def _A_ref(x, k_cache, v_cache, wq, wo):
        B, Sq, D = x.shape
        Hq, Dh = 16, 256
        Hkv = k_cache.shape[1]
        rep = Hq // Hkv
        q = (lambda x, *d: x.permute(*d))((x @ wq).reshape(B, Sq, Hq, Dh), 0, 2, 1, 3)
        k = (lambda x, n, axis: torch.repeat_interleave(x, n, dim=axis))(k_cache, rep, axis=1)
        v = (lambda x, n, axis: torch.repeat_interleave(x, n, dim=axis))(v_cache, rep, axis=1)
        scores = torch.einsum("bhqd,bhkd->bhqk", q, k) * (Dh ** -0.5)
        p = _softmax(scores, axis=-1)
        o = torch.einsum("bhqk,bhkd->bhqd", p, v)
        return (lambda x, *d: x.permute(*d))(o, 0, 2, 1, 3).reshape(B, Sq, Hq * Dh) @ wo

    def _B_ref(x, w_gate, w_up, w_down):
        return (_gelu(x @ w_gate) * (x @ w_up)) @ w_down

    x = A_x
    xn = _layernorm(x, axis=-1)
    s = _A_ref(xn, A_k_cache, A_v_cache, A_wq, A_wo)
    g = _silu(_B_ref(xn, B_w_gate, B_w_up, B_w_down))
    return x + s * g
```

```python
import sys, subprocess

HDR = """.amdgcn_target "amdgcn-amd-amdhsa--gfx950"
.text
.globl bench_kernel
.p2align 8
.type bench_kernel,@function
bench_kernel:
"""
def tail(vgpr, accum, sgpr=64):
    return f""".section .rodata,"a"
.p2align 6
.amdhsa_kernel bench_kernel
  .amdhsa_next_free_vgpr {vgpr}
  .amdhsa_next_free_sgpr {sgpr}
  .amdhsa_accum_offset {accum}
  .amdhsa_group_segment_fixed_size 0
  .amdhsa_kernarg_size 32
  .amdhsa_user_sgpr_count 2
  .amdhsa_user_sgpr_kernarg_segment_ptr 1
  .amdhsa_system_sgpr_workgroup_id_x 1
.end_amdhsa_kernel
.amdgpu_metadata
---
amdhsa.version: [1, 2]
amdhsa.kernels:
  - .name: bench_kernel
    .symbol: bench_kernel.kd
    .kernarg_segment_size: 32
    .kernarg_segment_align: 8
    .group_segment_fixed_size: 0
    .private_segment_fixed_size: 0
    .wavefront_size: 64
    .sgpr_count: {sgpr}
    .vgpr_count: {vgpr}
    .max_flat_workgroup_size: 1024
    .args:
      - {{.name: kernargs, .size: 32, .offset: 0, .value_kind: by_value}}
...
.end_amdgpu_metadata
"""

def gen(nwaves, seg, depth, nt, mode, grid=256, vgpr=None, order='kv'):
    o = []
    e = o.append
    e(HDR)
    per_wg = (256*256*1024)//grid
    per_wave = per_wg // nwaves
    nloads = per_wave // 1024
    e("s_memrealtime s[40:41]")
    e("s_load_dwordx4 s[4:7], s[0:1], 0")
    e("s_load_dwordx2 s[8:9], s[0:1], 16")
    e("v_lshrrev_b32 v2, 6, v0")
    e("v_and_b32 v1, 63, v0")
    e("s_nop 0")
    e("v_readfirstlane_b32 s24, v2")
    e("s_waitcnt lgkmcnt(0)")
    for (b, p, n) in ((12, 4, 1<<26), (16, 6, 1<<26), (20, 8, 1<<20)):
        e(f"s_mov_b32 s{b}, s{p}")
        e(f"s_mov_b32 s{b+1}, s{p+1}")
        e(f"s_mov_b32 s{b+2}, {n}")
        e(f"s_mov_b32 s{b+3}, 0x20000")
    e("s_and_b32 s25, s2, 7")
    e("s_lshr_b32 s26, s2, 3")
    e("s_lshl_b32 s25, s25, 23")
    e(f"s_mul_i32 s26, s26, {per_wg}")
    e("s_add_u32 s25, s25, s26")
    e(f"s_mul_i32 s27, s24, {per_wave}")
    e("s_add_u32 s25, s25, s27")
    lanes_per_row = seg//16
    rows = 64//lanes_per_row
    import math
    sh = int(math.log2(lanes_per_row))
    e(f"v_lshrrev_b32 v2, {sh}, v1")
    e(f"v_and_b32 v3, {lanes_per_row-1}, v1")
    e("v_lshlrev_b32 v2, 9, v2")
    e("v_lshlrev_b32 v3, 4, v3")
    e("v_add_u32 v2, v2, v3")
    if seg >= 512:
        e("v_lshlrev_b32 v2, 4, v1")
    ntf = " nt" if nt else ""
    per_tile = max(1, 512//seg)
    tile_bytes = rows*512 if seg < 512 else 1024
    loads = []
    for t in range(2):
        for j in range(nloads):
            tile = j // per_tile
            i = j % per_tile
            loads.append((t, tile*tile_bytes, i*seg if seg < 512 else 0))
    if order == 'inter':
        l2 = []
        for j in range(0, nloads, 8):
            l2 += loads[j:j+8] + loads[nloads+j:nloads+j+8]
        loads = l2
    if mode == 'lds':
        e(f"s_mul_i32 s28, s24, {depth*1024}")
    cur = {}
    for j, (t, so, imm) in enumerate(loads):
        srd = 12 if t == 0 else 16
        if cur.get('so') != so:
            e(f"s_add_u32 s30, s25, {so}")
            cur['so'] = so
        if j >= depth:
            e(f"s_waitcnt vmcnt({depth-1})")
        if mode == 'reg':
            r = 8 + 4*(j % depth)
            if r + 3 < 256:
                e(f"buffer_load_dwordx4 v[{r}:{r+3}], v2, s[{srd}:{srd+3}], s30 offen offset:{imm}{ntf}")
            else:
                r -= 256
                e(f"buffer_load_dwordx4 a[{r}:{r+3}], v2, s[{srd}:{srd+3}], s30 offen offset:{imm}{ntf}")
        else:
            slot = j % depth
            e(f"s_add_u32 m0, s28, {slot*1024}")
            if imm:
                e(f"s_add_u32 s31, s30, {imm}")
                e(f"buffer_load_dwordx4 v2, s[{srd}:{srd+3}], s31 offen{ntf} lds")
            else:
                e("s_nop 0")
                e(f"buffer_load_dwordx4 v2, s[{srd}:{srd+3}], s30 offen{ntf} lds")
    e("s_waitcnt vmcnt(0)")
    e("s_memrealtime s[42:43]")
    e("s_waitcnt lgkmcnt(0)")
    e(f"s_mul_i32 s30, s2, {nwaves}")
    e("s_add_u32 s30, s30, s24")
    e("s_lshl_b32 s30, s30, 4")
    e("v_mov_b32 v4, s40"); e("v_mov_b32 v5, s41"); e("v_mov_b32 v6, s42"); e("v_mov_b32 v7, s43")
    e("v_mov_b32 v3, 0")
    e("v_cmp_eq_u32 vcc, 0, v1")
    e("s_and_saveexec_b64 s[34:35], vcc")
    e("buffer_store_dwordx4 v[4:7], v3, s[20:23], s30 offen")
    e("s_waitcnt vmcnt(0)")
    e("s_endpgm")
    if mode == 'reg':
        need = 8 + 4*depth
    else:
        need = 16
    if vgpr is None:
        vgpr = need
    if vgpr > 256:
        acc = 256
    else:
        acc = (vgpr+3)//4*4
    e(tail(vgpr, acc))
    return "\n".join(o)

def build(name, src):
    open(name + ".s", "w").write(src)
    r = subprocess.run(["clang", "-x", "assembler", "-target", "amdgcn-amd-amdhsa", "-mcpu=gfx950", name + ".s", "-o", name + ".co"], capture_output=True, text=True)
    if r.returncode:
        print(r.stderr[:3000]); sys.exit(1)

if __name__ == "__main__":
    specs = []
    cfgs = []
    for nt in (0, 1):
        for seg in (512, 256, 128, 64):
            cfgs.append((4, seg, 16, nt, 'reg', 512))
            cfgs.append((8, seg, 8, nt, 'reg', 256))
    for nt in (0, 1):
        for d in (4, 8, 12, 24, 32, 60):
            cfgs.append((4, 512, d, nt, 'reg', 512))
    for nt in (0, 1):
        for (nw, d) in ((1, 32), (1, 48), (1, 60), (2, 16), (2, 30), (4, 8), (4, 16), (4, 32), (8, 8), (8, 16)):
            cfgs.append((nw, 512, d, nt, 'lds', 128 if nw <= 4 else 128))
    for (nw, seg, d, nt, mode, vg) in cfgs:
        name = f"st_{mode}_w{nw}_s{seg}_d{d}_nt{nt}"
        build(name, gen(nw, seg, d, nt, mode, vgpr=vg))
        lds = 160*1024 if mode == 'lds' else 100*1024
        specs.append(f"{name}.co:256:{nw*64}:{lds}")
    open("specs.txt", "w").write(" ".join(specs))
    print(len(specs))
```

```python
from gen_stream import HDR, tail, build
def gen(nst, flag):
    o = []; e = o.append
    e(HDR)
    e("s_memrealtime s[40:41]")
    e("s_load_dwordx4 s[8:11], s[0:1], 16")
    e("v_and_b32 v1, 63, v0")
    e("s_waitcnt lgkmcnt(0)")
    e("s_mov_b32 s20, s8"); e("s_mov_b32 s21, s9"); e("s_mov_b32 s22, 0x400000"); e("s_mov_b32 s23, 0x20000")
    e("s_mov_b32 s32, s10"); e("s_mov_b32 s33, s11"); e("s_mov_b32 s34, 0x4000000"); e("s_mov_b32 s35, 0x20000")
    e("v_lshlrev_b32 v2, 4, v0")
    e(f"s_mul_i32 s30, s2, {max(nst,1)*4096}")
    for k in range(nst):
        e(f"buffer_store_dwordx4 v[4:7], v2, s[32:35], s30 offen{flag}")
        e("s_add_u32 s30, s30, 4096")
    e("s_waitcnt vmcnt(0)")
    e("s_sleep 64")
    e("s_memrealtime s[42:43]")
    e("s_waitcnt lgkmcnt(0)")
    e("v_lshrrev_b32 v3, 6, v0"); e("s_nop 1"); e("v_readfirstlane_b32 s24, v3")
    e("s_lshl_b32 s30, s2, 2"); e("s_add_u32 s30, s30, s24"); e("s_lshl_b32 s30, s30, 7")
    e("s_mov_b64 exec, 1"); e("v_mov_b32 v3, 0")
    for k in range(2):
        e(f"v_mov_b32 v4, s{40+2*k}"); e(f"v_mov_b32 v5, s{41+2*k}")
        e(f"buffer_store_dwordx2 v[4:5], v3, s[20:23], s30 offen offset:{8*k} sc1")
        e("s_nop 1")
    e("s_waitcnt vmcnt(0)")
    e("s_endpgm")
    e(tail(64, 64, sgpr=96))
    return "\n".join(o)
specs = []
for (nst, flag) in ((0, ''), (1, ''), (2, ''), (4, ''), (16, ''), (1, ' sc1'), (4, ' sc1'), (16, ' sc1')):
    name = f"dirty_{nst}_{flag.strip() or 'plain'}"
    build(name, gen(nst, flag))
    specs.append(f"{name}.co:256:256:0:2")
open("specs.txt", "w").write(" ".join(specs))
```
